```python
import torch

def _softmax(x, axis=-1):
    return torch.softmax(x, dim=axis)

def _gelu(x):
    return torch.nn.functional.gelu(x, approximate='tanh')

def _silu(x):
    return torch.nn.functional.silu(x)

def _sigmoid(x):
    return torch.sigmoid(x)

def _layernorm(x, axis=-1, eps=1e-05):
    m = x.mean(dim=axis, keepdim=True)
    v = x.var(dim=axis, keepdim=True, unbiased=False)
    return (x - m) / torch.sqrt(v + eps)

def _scatter_add(tgt, idx, src, axis=0):
    return tgt.clone().index_add_(axis, idx, src)

def _segment_sum(src, seg, n):
    out = torch.zeros((n,) + src.shape[1:], dtype=src.dtype)
    return out.index_add_(0, seg, src)

def _pad(x, pw):
    flat = tuple((v for pair in reversed(pw) for v in pair))
    return torch.nn.functional.pad(x, flat)
kernel_name = 'adaLN_cond__softmax_full_mha__glu_gated_geglu__prompt'

def setup_inputs():

    _w = lambda a: (lambda t: t.to(torch.bfloat16) if t.is_floating_point() else t)(torch.as_tensor(a))

    def _A_setup():
        B, S, D = (1, 2048, 512)
        return {'x': _w((lambda *s: torch.randn(*s, dtype=torch.bfloat16) * 0.05)(B, S, D)), 'wqkv': _w((lambda *s: torch.randn(*s, dtype=torch.bfloat16) * 0.05)(D, 3 * D)), 'wo': _w((lambda *s: torch.randn(*s, dtype=torch.bfloat16) * 0.05)(D, D))}
    _A_in = _A_setup()

    def _B_setup():
        B, S, Dm, Df = (1, 2048, 512, 1792)
        return {'x': _w((lambda *s: torch.randn(*s, dtype=torch.bfloat16) * 0.05)(B, S, Dm)), 'w_gate': _w((lambda *s: torch.randn(*s, dtype=torch.bfloat16) * 0.8)(Dm, Df) * Dm ** (-0.5)), 'w_up': _w((lambda *s: torch.randn(*s, dtype=torch.bfloat16) * 0.8)(Dm, Df) * Dm ** (-0.5)), 'w_down': _w((lambda *s: torch.randn(*s, dtype=torch.bfloat16) * 0.8)(Df, Dm) * Df ** (-0.5))}
    _B_in = _B_setup()
    return {'A_x': _A_in['x'], 'A_wqkv': _A_in['wqkv'], 'A_wo': _A_in['wo'], 'B_x': _B_in['x'], 'B_w_gate': _B_in['w_gate'], 'B_w_up': _B_in['w_up'], 'B_w_down': _B_in['w_down'], 'c': _w((lambda *s: torch.randn(*s, dtype=torch.bfloat16) * 0.1)(1, 512) * 8.0), 'w_mod': _w((lambda *s: torch.randn(*s, dtype=torch.bfloat16) * 0.1)(512, 6 * 512) * 512 ** (-0.5) * 8.0)}

def reference(A_x, A_wqkv, A_wo, B_x, B_w_gate, B_w_up, B_w_down, c, w_mod):

    def _A_ref(x, wqkv, wo):
        B, S, D = x.shape
        H = 32
        Dh = D // H
        qkv = (lambda x, *d: x.permute(*d))((x @ wqkv).reshape(B, S, 3, H, Dh), 2, 0, 3, 1, 4)
        q, k, v = (qkv[0], qkv[1], qkv[2])
        scale = Dh ** (-0.5)
        scores = torch.einsum('bhqd,bhkd->bhqk', q, k) * scale
        p = _softmax(scores, axis=-1)
        o = torch.einsum('bhqk,bhkd->bhqd', p, v)
        return (lambda x, *d: x.permute(*d))(o, 0, 2, 1, 3).reshape(B, S, D) @ wo

    def _B_ref(x, w_gate, w_up, w_down):
        g = torch.einsum('bsd,df->bsf', x, w_gate)
        u = torch.einsum('bsd,df->bsf', x, w_up)
        h = _gelu(g) * u
        return torch.einsum('bsf,fd->bsd', h, w_down)
    x = A_x
    mod = (_silu(c) @ w_mod).reshape(c.shape[0], 6, 1, -1)
    sa, ca, ga, sb, cb, gb = (mod[:, 0].clone(), mod[:, 1].clone(), mod[:, 2].clone(), mod[:, 3].clone(), mod[:, 4].clone(), mod[:, 5].clone())
    h = _layernorm(x, axis=-1) * (1 + ca) + sa
    x = x + ga * _A_ref(h, A_wqkv, A_wo)
    h = _layernorm(x, axis=-1) * (1 + cb) + sb
    x = x + gb * _B_ref(h, B_w_gate, B_w_up, B_w_down)
    return x
```

```python
import re

TRANS = ("v_exp_f32", "v_log_f32", "v_rcp_f32", "v_rsq_f32", "v_sqrt_f32", "v_sin_f32", "v_cos_f32")

def regs_of(tok):
    tok = tok.strip()
    if tok.startswith("-"): tok = tok[1:]
    m = re.fullmatch(r"abs\((.*)\)", tok)
    if m: tok = m.group(1)
    m = re.fullmatch(r"\|(.*)\|", tok)
    if m: tok = m.group(1)
    m = re.fullmatch(r"([vsa])(\d+)", tok)
    if m: return [(m.group(1), int(m.group(2)))]
    m = re.fullmatch(r"([vsa])\[(\d+):(\d+)\]", tok)
    if m: return [(m.group(1), i) for i in range(int(m.group(2)), int(m.group(3)) + 1)]
    if tok == "vcc": return [("s", "vcc_lo"), ("s", "vcc_hi")]
    if tok in ("vcc_lo", "vcc_hi"): return [("s", tok)]
    if tok == "exec": return [("s", "exec_lo"), ("s", "exec_hi")]
    if tok in ("exec_lo", "exec_hi"): return [("s", tok)]
    if tok == "m0": return [("s", "m0")]
    return []

class Ins:
    def __init__(self, text):
        self.text = text
        t = text.split(";")[0].strip()
        self.is_label = t.endswith(":")
        self.is_dir = t.startswith(".")
        self.defs = []; self.uses = []; self.kind = "other"
        self.target = None
        self.srcC = []; self.srcAB = []
        self.passes = 0
        self.dpp = False; self.lds = False
        if self.is_label:
            self.label = t[:-1]; self.kind = "label"; return
        if self.is_dir or not t:
            self.kind = "dir"; return
        parts = t.split(None, 1)
        self.op = op = parts[0]
        rest = parts[1] if len(parts) > 1 else ""
        ops = []; cur = ""; depth = 0
        for ch in rest:
            if ch in "[(": depth += 1
            if ch in "])": depth -= 1
            if ch == "," and depth == 0:
                ops.append(cur.strip()); cur = ""
            else: cur += ch
        if cur.strip(): ops.append(cur.strip())
        mods = ""
        if ops:
            last = ops[-1].split(None, 1)
            if len(last) > 1 and not op.startswith("s_waitcnt"):
                ops[-1] = last[0]; mods = last[1]
        self.ops = ops; self.mods = mods
        R = [regs_of(o) for o in ops]
        flat = lambda L: [x for l in L for x in l]
        if op.startswith("v_mfma") or op.startswith("v_smfmac"):
            self.kind = "mfma"; self.defs = R[0]; self.uses = flat(R[1:4]); self.srcC = R[3]; self.srcAB = R[1] + R[2]
            self.passes = 8 if "32x32" in op else 4
        elif op.startswith("v_cmp"):
            self.kind = "valu"; self.defs = R[0]; self.uses = flat(R[1:])
        elif op.startswith("v_readfirstlane") or op.startswith("v_readlane"):
            self.kind = "valu"; self.defs = R[0]; self.uses = flat(R[1:])
        elif op.startswith("v_permlane"):
            self.kind = "valu"; self.defs = R[0] + R[1]; self.uses = R[0] + R[1]
        elif op.startswith(("v_add_co", "v_sub_co", "v_addc_co", "v_subb_co")):
            self.kind = "valu"; self.defs = R[0] + R[1]; self.uses = flat(R[2:])
        elif op.startswith("v_nop"):
            self.kind = "valu"
        elif op.startswith("v_"):
            self.kind = "valu"; self.defs = R[0]; self.uses = flat(R[1:])
            if op.startswith(("v_fmac", "v_dot2c", "v_writelane")): self.uses += R[0]
            if "_dpp" in op:
                self.dpp = True; self.uses += R[0]
            if "_sdwa" in op: self.uses += R[0]
        elif op.startswith("ds_read"):
            self.kind = "ds"; self.defs = R[0]; self.uses = flat(R[1:])
        elif op.startswith("ds_"):
            self.kind = "ds"; self.uses = flat(R)
        elif op.startswith(("buffer_load", "global_load")):
            self.kind = "vmem"
            if " lds" in " " + mods or op.startswith("global_load_lds"):
                self.lds = True; self.uses = flat(R) + [("s", "m0")]
            else:
                self.defs = R[0]; self.uses = flat(R[1:])
        elif op.startswith(("buffer_store", "global_store")):
            self.kind = "vmem"; self.uses = flat(R)
            self.store_data = R[0] if op.startswith("buffer") else R[1]
            self.wide = op.endswith(("x3", "x4"))
        elif op.startswith("buffer_atomic") or op.startswith("global_atomic"):
            self.kind = "vmem"; self.uses = flat(R)
            if "sc0" in mods: self.defs = R[0]
        elif op.startswith(("buffer_", "global_")):
            self.kind = "vmem"
        elif op.startswith(("s_load", "s_buffer_load", "s_memtime", "s_memrealtime")):
            self.kind = "smem"; self.defs = R[0]; self.uses = flat(R[1:])
        elif op in ("s_branch",) or op.startswith("s_cbranch"):
            self.kind = "branch"; self.target = ops[0]
        elif op in ("s_waitcnt", "s_barrier", "s_nop", "s_endpgm", "s_setprio", "s_sleep"):
            self.kind = op
        elif op.startswith(("s_cmp", "s_bitcmp")):
            self.kind = "salu"; self.uses = flat(R)
        elif op.startswith("s_"):
            self.kind = "salu"; self.defs = R[0]; self.uses = flat(R[1:])
            if "saveexec" in op: self.defs = self.defs + regs_of("exec")
        else:
            raise ValueError("unknown instr: " + text)
    def states(self):
        if self.kind in ("label", "dir"): return 0
        if self.kind == "s_nop": return int(self.ops[0]) + 1
        return 1

def need(p, c):
    n = 0
    if c.kind in ("label", "dir"): return 0
    pd = set(p.defs)
    vd = {r for r in pd if r[0] in "va"}
    sd = {r for r in pd if r[0] == "s"}
    cu = set(c.uses); cd = set(c.defs)
    if p.kind == "valu":
        if vd:
            if c.kind == "mfma" and vd & cu: n = max(n, 2)
            if c.kind == "valu":
                if c.op.startswith(("v_readlane", "v_readfirstlane")) and vd & cu: n = max(n, 1)
                if c.op.startswith("v_permlane") and vd & cu: n = max(n, 2)
                if c.dpp and vd & cu: n = max(n, 2)
            if p.op.startswith(TRANS) and vd & cu and not (c.kind == "valu" and c.op.startswith(TRANS)): n = max(n, 1)
            if "_sdwa" in p.op and c.kind == "valu" and vd & (cu | cd): n = max(n, 1)
        if sd:
            if c.kind == "vmem" and sd & cu: n = max(n, 5)
            if c.kind == "valu" and sd & cu:
                n = max(n, 4 if c.op.startswith(("v_readlane", "v_writelane")) else 2)
            if c.kind in ("salu", "smem") and sd & cu: n = max(n, 1)
    if p.kind == "mfma":
        big = p.passes == 8
        if c.kind == "mfma":
            if vd & set(c.srcAB): n = max(n, 12 if big else 8)
            if vd & set(c.srcC):
                if not (list(c.srcC) == list(p.defs) and c.passes == p.passes): n = max(n, 10 if big else 6)
            elif vd & cd: n = max(n, 10 if big else 6)
        elif c.kind in ("valu", "vmem", "ds"):
            if vd & (cu | cd): n = max(n, 12 if big else 8)
        if c.kind == "valu" and set(p.srcC) & cd: n = max(n, 7 if big else 3)
    if p.kind == "salu" and ("s", "m0") in pd and c.kind == "vmem" and c.lds: n = max(n, 1)
    if p.kind == "vmem" and getattr(p, "wide", False):
        if set(p.store_data) & cd: n = max(n, 2 if c.kind in ("valu", "mfma") else 1)
    return n

def pad_hazards(lines):
    ins = [Ins(l) for l in lines]
    MAXD = 13
    inserted = 0
    while True:
        labels = {x.label: i for i, x in enumerate(ins) if x.kind == "label"}
        fix = {}
        for i, p in enumerate(ins):
            if p.kind not in ("valu", "mfma", "salu", "vmem"): continue
            if p.kind == "salu" and ("s", "m0") not in p.defs: continue
            if p.kind == "vmem" and not getattr(p, "wide", False): continue
            maxd = MAXD if p.kind == "mfma" else 6
            stack = [(i + 1, 0)]; seen = {}
            while stack:
                j, d = stack.pop()
                while j < len(ins) and d < maxd:
                    if seen.get(j, 99) <= d: break
                    seen[j] = d
                    c = ins[j]
                    r = need(p, c)
                    if r > d: fix[j] = max(fix.get(j, 0), r - d)
                    if c.kind == "s_endpgm": break
                    d += c.states()
                    if c.kind == "branch":
                        if c.target in labels: stack.append((labels[c.target], d))
                        if c.op == "s_branch": break
                    j += 1
        if not fix: break
        out = []; last = -100
        for j, x in enumerate(ins):
            if j in fix and j - last > MAXD:
                out.append(Ins(f"    s_nop {fix[j]-1}")); inserted += 1; last = j
            out.append(x)
        ins = out
    return [x.text for x in ins], inserted

def check_waits(lines):
    ins = [Ins(l) for l in lines]
    errs = []
    snap = {}
    vm = []; lg = []
    dead = False
    def merge(a, b):
        n = max(len(a), len(b)); a = [set()] * (n - len(a)) + a; b = [set()] * (n - len(b)) + b
        return [x | y for x, y in zip(a, b)]
    for i, x in enumerate(ins):
        if x.kind == "label":
            if x.label in snap:
                svm, slg = snap.pop(x.label)
                if dead: vm, lg = svm, slg
                else:
                    vm, lg = merge(vm, svm), merge(lg, slg)
                dead = False
            elif dead:
                vm, lg = [], []; dead = False
            continue
        if x.kind == "dir": continue
        if x.kind == "s_waitcnt":
            t = x.text
            m = re.search(r"vmcnt\((\d+)\)", t)
            if m:
                n = int(m.group(1)); vm = vm[len(vm) - n:] if n < len(vm) and n > 0 else ([] if n == 0 else vm)
            m = re.search(r"lgkmcnt\((\d+)\)", t)
            if m:
                n = int(m.group(1))
                if n == 0: lg = []
                else:
                    if any(("smem",) in s for s in lg): pass
                    elif n < len(lg): lg = lg[len(lg) - n:]
            continue
        touched = set(x.uses) | set(x.defs)
        for q, nm in ((vm, "vm"), (lg, "lgkm")):
            for s in q:
                hit = touched & s
                if hit and not (x.kind in ("ds",) and nm == "lgkm" and not (set(x.uses) & s)) and not (x.kind == "vmem" and nm == "vm" and not (set(x.uses) & s)):
                    errs.append(f"line {i}: {x.text.strip()} touches pending {nm} {sorted(hit, key=str)[:4]}")
        if x.kind == "vmem": vm.append(set(x.defs))
        if x.kind == "ds": lg.append(set(x.defs))
        if x.kind == "smem": lg.append(set(x.defs) | {("smem",)})
        if x.kind == "branch":
            if x.target in snap: snap[x.target] = (merge(vm, snap[x.target][0]), merge(lg, snap[x.target][1]))
            else: snap[x.target] = (list(vm), list(lg))
            if x.op == "s_branch": dead = True
        if x.kind == "s_endpgm": dead = True
    return errs

class Asm:
    def __init__(self):
        self.lines = []
        self.vm = []
        self.lg = []
        self.nlab = 0
    def __call__(self, text, tag=None):
        for l in text.strip().split("\n"):
            l = l.strip()
            if not l: continue
            self.lines.append("    " + l if not l.endswith(":") else l)
            op = l.split()[0]
            if op.startswith(("buffer_", "global_")): self.vm.append(tag)
            elif op.startswith("ds_"): self.lg.append(tag)
            elif op.startswith(("s_load", "s_memtime", "s_memrealtime")): self.lg.append("smem")
            elif op == "s_waitcnt":
                m = re.search(r"vmcnt\((\d+)\)", l)
                if m:
                    n = int(m.group(1)); self.vm = self.vm[len(self.vm) - n:] if 0 < n < len(self.vm) else ([] if n == 0 else self.vm)
                m = re.search(r"lgkmcnt\((\d+)\)", l)
                if m:
                    n = int(m.group(1)); self.lg = self.lg[len(self.lg) - n:] if 0 < n < len(self.lg) else ([] if n == 0 else self.lg)
    def label(self, name): self.lines.append(name + ":")
    def newlabel(self, base):
        self.nlab += 1; return f"L_{base}_{self.nlab}"
    def _cnt(self, q, tags):
        idx = [i for i, t in enumerate(q) if t in tags]
        if not idx: return None
        return len(q) - 1 - max(idx)
    def wait(self, vm=None, lg=None):
        s = []
        if vm is not None:
            n = self._cnt(self.vm, vm if isinstance(vm, (list, tuple, set)) else [vm])
            if n is not None: s.append(f"vmcnt({min(n, 63)})")
        if lg is not None:
            n = self._cnt(self.lg, lg if isinstance(lg, (list, tuple, set)) else [lg])
            if n is not None:
                if "smem" in self.lg: n = 0
                s.append(f"lgkmcnt({min(n, 15)})")
        if s: self("s_waitcnt " + " ".join(s))
    def state(self): return (list(self.vm), list(self.lg))
    def restore(self, st): self.vm, self.lg = list(st[0]), list(st[1])

def vr(a, n=1): return f"v{a}" if n == 1 else f"v[{a}:{a+n-1}]"
def sr(a, n=1): return f"s{a}" if n == 1 else f"s[{a}:{a+n-1}]"
```

```python
from mblib import *
from cdna_launch import _hip
sys.path.insert(0, "gen")
from asmlib import *

def kern(var, nseg=12, iters=4):
    a = Asm()
    a("""
    s_load_dwordx2 s[4:5], s[0:1], 0
    s_load_dwordx2 s[24:25], s[0:1], 8
    s_waitcnt lgkmcnt(0)
    s_mov_b32 s8, s4
    s_mov_b32 s9, s5
    s_mov_b32 s10, 0x1000000
    s_mov_b32 s11, 0x20000
    s_mov_b32 s28, s24
    s_mov_b32 s29, s25
    s_mov_b32 s30, 0x1000000
    s_mov_b32 s31, 0x20000
    v_lshrrev_b32 v2, 6, v0
    v_and_b32 v1, 63, v0
    v_readfirstlane_b32 s44, v2
    v_lshlrev_b32 v4, 4, v1
    s_lshl_b32 s45, s44, 10
    """)
    for i in range(4):
        a(f"s_add_u32 m0, s45, {i*8192}\ns_add_u32 s3, s45, {i*8192}\nbuffer_load_dwordx4 v4, s[8:11], s3 offen lds")
    a("s_add_u32 s3, s45, 65536\nbuffer_load_dwordx4 v[8:11], v4, s[8:11], s3 offen")
    vQ, vNM, vO, vSa, vSb, vP, vK, vV, vVA = 8, 16, 32, 48, 64, 80, 88, 96, 5
    a(f"v_and_b32 v{vVA}, 15, v1\nv_lshlrev_b32 v{vVA}, 4, v{vVA}\nv_lshrrev_b32 v2, 5, v1\nv_lshl_add_u32 v{vVA}, v2, 8, v{vVA}")
    if "1" in var.split("_")[0]:
        for r in range(16): a(f"v_mov_b32 v{vV+r}, 0x3f803f80")
    else:
        a(f"v_and_b32 v2, 27, v1\nv_cmp_eq_u32 vcc, 16, v2\nv_mov_b32 v3, 0x3f803f80\nv_cndmask_b32 v2, 0, v3, vcc")
        for r in range(16): a(f"v_mov_b32 v{vV+r}, v2")
    for r in range(16): a(f"v_mov_b32 v{vNM+r}, -4.0")
    for r in range(48): a(f"v_mov_b32 v{vO+r}, 0")
    for r in range(16): a(f"v_mov_b32 v{vP+r}, 0")
    a("s_mov_b32 s60, 0xffff\ns_mov_b32 s61, 0xffff\ns_waitcnt vmcnt(0)\ns_barrier")
    a(f"ds_read_b128 v[88:91], v4\nds_read_b128 v[92:95], v4 offset:1024\ns_mov_b64 exec, s[60:61]")
    for i in range(4): a(f"ds_read_b128 v[{96+4*i}:{99+4*i}], v5 offset:{4096+512*i}")
    a("s_mov_b64 exec, -1\ns_waitcnt lgkmcnt(0)")
    a(f"v_mfma_f32_32x32x16_bf16 v[48:63], v[88:91], v[8:11], v[16:31]\nv_mfma_f32_32x32x16_bf16 v[64:79], v[92:95], v[8:11], v[16:31]\ns_nop 15")
    if "E" not in var:
        for i in range(8): a(f"v_cvt_pk_bf16_f32 v{vP+i}, v{48+2*i}, v{49+2*i}")
    a("v_mov_b32 v120, 0\ns_mov_b32 s46, 0\nv_lshlrev_b32 v6, 7, v1\nv_lshlrev_b32 v7, 2, v1\ns_mov_b64 vcc, -1")
    a.label("L_seg")
    a("s_memtime s[50:51]\ns_memrealtime s[52:53]\ns_waitcnt lgkmcnt(0)\ns_mov_b32 m0, s46\nv_writelane_b32 v120, s50, m0\ns_add_u32 s46, s46, 1\ns_mov_b32 m0, s46\nv_writelane_b32 v120, s52, m0\ns_add_u32 s46, s46, 1")
    a(f"s_cmp_eq_u32 s46, {2*nseg+2}\ns_cbranch_scc1 L_done\ns_mov_b32 s47, {iters}\ns_add_u32 m0, s45, 49152")
    a.label("L_it")
    for t in range(4):
        S = vSa if t % 2 == 0 else vSb
        T = S if "Q" in var else 112
        e = (lambda i: a(f"v_exp_f32 v{(S+i) if 'Q' in var else 112+(i%4)}, v{S+i}")) if "E" in var.split("_")[0] else (lambda i: None)
        c = (lambda i: a(f"v_cvt_pk_bf16_f32 v{vP+i}, v{S+2*i}, v{S+2*i+1}")) if "C" in var else (lambda i: None)
        def qk(t):
            if "Q" in var: a(f"v_mfma_f32_32x32x16_bf16 {vr(vSa if t%2==0 else vSb,16)}, {vr(vK+4*(t&1),4)}, {vr(vQ,4)}, {vr(vNM,16) if 'z' not in var else 0}")
        def pv(t, i):
            if "P" in var: a(f"v_mfma_f32_32x32x16_bf16 {vr(vO,16)}, {vr(vV+8*(t&1)+4*i,4)}, {vr(vP+4*i,4)}, {vr(vO,16)}")
            if "p" in var.split("_")[0]: a(f"v_mfma_f32_16x16x32_bf16 {vr(vO+4*i,4)}, {vr(vK+4*(t&1),4)}, {vr(vP+4*i,4)}, {vr(vO+4*i,4)}")
            if "s" in var.split("_")[0]: a(f"v_smfmac_f32_32x32x32_bf16 {vr(vO,16)}, {vr(vK+4*(t&1),4)}, {vr(vP,8)}, v121" if i == 0 else "s_nop 0")
        a("s_waitcnt lgkmcnt(0)")
        if "B" in var and t == 2:
            if "_" in var: a(f"s_waitcnt vmcnt({int(var.split('_')[1][1:])})")
            a("s_barrier")
        a(f"s_setprio {3 - ((t + 2) % 4)}")
        qk(t + 1)
        e(0); e(1); e(2); e(3); c(0); e(4); e(5); c(1)
        pv(t - 1, 1)
        if "D" in var:
            a(f"ds_read_b128 {vr(vK+4*(t&1),4)}, v4 offset:{((t+2)%4)*1024 + 8192*(t&1)}")
            o = 4096 + ((t + 1) % 4) * 1024 + 16384
            a(f"s_mov_b64 exec, s[60:61]\nds_read_b128 {vr(vV+8*((t+1)&1),4)}, v5 offset:{o}\nds_read_b128 {vr(vV+8*((t+1)&1)+4,4)}, v5 offset:{o+512}\ns_mov_b64 exec, -1")
        nd = int(var.split("_")[1][1:]) if "_" in var else 0
        kind = var.split("_")[1][0] if "_" in var else ""
        def dma(i):
            if kind in "lLx":
                a(f"s_add_u32 m0, s45, {49152 + (i%4)*8192}")
                if kind == "x": a("s_nop 0")
                a(f"s_add_u32 s3, s45, {(i%8)*8192}")
                a(f"buffer_load_dwordx4 v4, s[8:11], s3 offen lds")
            elif kind == "m":
                a(f"buffer_load_dwordx4 v4, s[8:11], s45 offen lds")
            elif kind == "r":
                a(f"s_add_u32 s3, s45, {(i%8)*8192}")
                a(f"buffer_load_dwordx4 v[124:127], v4, s[8:11], s3 offen")
            elif kind == "t":
                a(f"s_add_u32 s3, s45, {(i%8)*8192}")
                a(f"buffer_load_dword v124, v6, s[8:11], s3 offen")
            elif kind == "w":
                a(f"s_add_u32 s3, s45, {(i%8)*8192}")
                a(f"buffer_load_dword v124, v7, s[8:11], s3 offen")
            elif kind == "b":
                a(f"s_cbranch_vccnz L_sk{t}_{i}\ns_nop 0\nL_sk{t}_{i}:")
        n1 = (nd + 3 - t) // 4
        e(6); e(7); c(2)
        if n1 > 0: dma(2*t)
        e(8); e(9); c(3); e(10); e(11)
        pv(t, 0)
        c(4); e(12); e(13); c(5)
        for i in range(1, n1): dma(2*t + i + 8)
        e(14); e(15); c(6); c(7)
        if var == "N": a("s_nop 15\n" * 6)
    a("s_sub_u32 s47, s47, 1\ns_cmp_lg_u32 s47, 0\ns_cbranch_scc1 L_it\ns_branch L_seg")
    a.label("L_done")
    a("s_lshl_b32 s3, s2, 11\nv_lshlrev_b32 v2, 2, v0\nv_add_u32 v2, s3, v2\nbuffer_store_dword v120, v2, s[28:31], 0 offen\ns_waitcnt vmcnt(0)")
    lines, _ = pad_hazards(a.lines)
    return wrap("mb_kernel", "\n".join(lines), vgpr=128)
if not os.path.exists("/dev/kfd"):
    for v in ("ECQPDB", "ECQsDB", "ECQPDB_l4", "ECQPDB_b8", "ECQPDB_t2"): build(kern(v), "mb_kernel", 12, "mb_pw")
    print("built"); raise SystemExit
import torch; torch.manual_seed(0)
d = torch.randn(1 << 20).to(torch.bfloat16); d[32768:] *= 0.5
data = DeviceBuffer.from_numpy(d.view(torch.int16).numpy()); out = DeviceBuffer(1 << 22); big = DeviceBuffer(1 << 29)
ka = pack_ptr_kernargs([data.ptr, out.ptr] + [0]*10)
nseg = 12
for var in sys.argv[1:] or ("N", "E", "EC", "ECQ", "ECQP", "ECQP1", "ECQPD", "ECQPDB", "ECQPDB1", "ECQPDBz", "ECQpDB", "ECQsDB", "QP", "QPD"):
    k = AsmKernel(build(kern(var, nseg), "mb_kernel", 12, "mb_pw"), "mb_kernel")
    for rep in range(3):
        hip_check(_hip.hipMemset(ctypes.c_void_p(big.ptr), 1, 1 << 29)); sync()
        k.launch((256,1,1), (512,1,1), ka, 100*1024); sync()
    o = out.to_numpy(np.uint32, (256, 8, 64)).astype(np.int64)
    cy = o[:, :, 0:2*nseg+2:2]; rt = o[:, :, 1:2*nseg+2:2]
    dc = np.median(np.diff(cy, axis=2).reshape(-1, nseg), 0); dr = np.median(np.diff(rt, axis=2).reshape(-1, nseg), 0)
    totc = np.median(cy[:, :, -1].max(1) - cy[:, :, 0].min(1)); totr = np.median(rt[:, :, -1].max(1) - rt[:, :, 0].min(1))
    print(f"{var:10s} cyc/tilepair {totc/nseg/16:6.1f} ns/tilepair {totr*10/nseg/16:6.1f}  clk by seg:", np.round(dc / dr / 10, 2), flush=True)
    k.unload()
```
